```python
import torch

def _softmax(x, axis=-1):
    return torch.softmax(x, dim=axis)
def _gelu(x):
    return torch.nn.functional.gelu(x, approximate="tanh")
def _silu(x):
    return torch.nn.functional.silu(x)
def _sigmoid(x):
    return torch.sigmoid(x)
def _layernorm(x, axis=-1, eps=1e-5):
    m = x.mean(dim=axis, keepdim=True)
    v = x.var(dim=axis, keepdim=True, unbiased=False)
    return (x - m) / torch.sqrt(v + eps)
def _scatter_add(tgt, idx, src, axis=0):
    return tgt.clone().index_add_(axis, idx, src)
def _segment_sum(src, seg, n):
    out = torch.zeros((n,) + src.shape[1:], dtype=src.dtype)
    return out.index_add_(0, seg, src)
def _pad(x, pw):
    flat = tuple(v for pair in reversed(pw) for v in pair)
    return torch.nn.functional.pad(x, flat)

kernel_name = 'sequential_preLN__sliding_local_dilated__glu_gated_glu__prompt'

def setup_inputs():

    _w = (lambda a: (lambda t: t.to(torch.bfloat16) if t.is_floating_point() else t)(torch.as_tensor(a)))
    def _A_setup():
        B, S, D = 1, 2048, 512
        return {
            "x": _w((lambda *s: torch.randn(*s, dtype=torch.bfloat16) * 0.05)(B, S, D)),
            "wqkv": _w((lambda *s: torch.randn(*s, dtype=torch.bfloat16) * 0.05)(D, 3 * D)),
            "wo": _w((lambda *s: torch.randn(*s, dtype=torch.bfloat16) * 0.05)(D, D)),
        }
    _A_in = _A_setup()

    def _B_setup():
        B, S, D, F = 1, 2048, 512, 1792
        return {
            "x": _w((lambda *s: torch.randn(*s, dtype=torch.bfloat16) * 0.05)(B, S, D)),
            "w_gate": _w((lambda *s: torch.randn(*s, dtype=torch.bfloat16) * 0.05)(D, F)),
            "w_up": _w((lambda *s: torch.randn(*s, dtype=torch.bfloat16) * 0.05)(D, F)),
            "w_down": _w((lambda *s: torch.randn(*s, dtype=torch.bfloat16) * 0.05)(F, D)),
        }
    _B_in = _B_setup()

    return {
        "A_x": _A_in["x"],
        "A_wqkv": _A_in["wqkv"],
        "A_wo": _A_in["wo"],
        "B_x": _B_in["x"],
        "B_w_gate": _B_in["w_gate"],
        "B_w_up": _B_in["w_up"],
        "B_w_down": _B_in["w_down"],
    }

def reference(A_x, A_wqkv, A_wo, B_x, B_w_gate, B_w_up, B_w_down):
    def _A_ref(x, wqkv, wo):
        B, S, D = x.shape
        H = 32; Dh = D // H
        W, dil = 8, 2
        qkv = (lambda x, *d: x.permute(*d))((x @ wqkv).reshape(B, S, 3, H, Dh), 2, 0, 3, 1, 4)
        q, k, v = qkv[0], qkv[1], qkv[2]
        scale = Dh ** -0.5
        pos = torch.arange(S)
        off = torch.arange(W) * dil
        idx = pos[:, None] - off[None, :]
        mask = idx >= 0
        idx_c = torch.where(mask, idx, 0).reshape(-1)
        kg = k[:, :, idx_c, :].reshape(B, H, S, W, Dh)
        vg = v[:, :, idx_c, :].reshape(B, H, S, W, Dh)
        logits = torch.einsum("bhsd,bhswd->bhsw", q, kg) * scale
        logits = torch.where(mask[None, None, :, :], logits, -1e9)
        attn = _softmax(logits, axis=-1)
        o = torch.einsum("bhsw,bhswd->bhsd", attn, vg)
        return (lambda x, *d: x.permute(*d))(o, 0, 2, 1, 3).reshape(B, S, D) @ wo

    def _B_ref(x, w_gate, w_up, w_down):
        g = torch.einsum("bsd,df->bsf", x, w_gate)
        u = torch.einsum("bsd,df->bsf", x, w_up)
        h = _sigmoid(g) * u
        return torch.einsum("bsf,fd->bsd", h, w_down)

    x = A_x
    h = x + _A_ref(_layernorm(x, axis=-1), A_wqkv, A_wo)
    h2 = h + _B_ref(_layernorm(h, axis=-1), B_w_gate, B_w_up, B_w_down)
    return h2
```

```python
import re

class Asm:
    def __init__(self):
        self.lines = []
    def __call__(self, text):
        for l in text.split("\n"):
            l = l.strip()
            if l: self.lines.append(l)
    def c(self, text):
        self.lines.append("; " + text)
    def label(self, name):
        self.lines.append(name + ":")
    def text(self):
        out = []
        for l in self.lines:
            if l.endswith(":") or l.startswith(".") or l.startswith(";"):
                out.append(l)
            else:
                out.append("    " + l)
        return "\n".join(out) + "\n"

def v(i, n=1):
    return f"v{i}" if n == 1 else f"v[{i}:{i+n-1}]"
def a(i, n=1):
    return f"a{i}" if n == 1 else f"a[{i}:{i+n-1}]"
def s(i, n=1):
    return f"s{i}" if n == 1 else f"s[{i}:{i+n-1}]"

_REG = re.compile(r"^(-|abs\()?([vas])(?:(\d+)|\[(\d+):(\d+)\])\)?$")
def parse_reg(tok):
    tok = tok.strip()
    if tok in ("vcc",): return {("s", "vcc_lo"), ("s", "vcc_hi")}
    if tok in ("vcc_lo", "vcc_hi", "m0", "exec_lo", "exec_hi"): return {("s", tok)}
    if tok == "exec": return {("s", "exec_lo"), ("s", "exec_hi")}
    m = _REG.match(tok)
    if not m: return set()
    k = m.group(2)
    if m.group(3) is not None:
        return {(k, int(m.group(3)))}
    return {(k, i) for i in range(int(m.group(4)), int(m.group(5)) + 1)}

TRANS = ("v_exp_f32", "v_log_f32", "v_rcp_f32", "v_rsq_f32", "v_sqrt_f32", "v_sin_f32", "v_cos_f32")
def split_ops(rest):
    ops = []; depth = 0; cur = ""
    for ch in rest:
        if ch == "[": depth += 1
        if ch == "]": depth -= 1
        if ch == "," and depth == 0:
            ops.append(cur.strip()); cur = ""
        else: cur += ch
    if cur.strip(): ops.append(cur.strip())
    return ops

class Ins:
    def __init__(self, line):
        self.line = line
        line = line.split(";")[0].strip()
        parts = line.split(None, 1)
        self.op = parts[0]
        rest = parts[1] if len(parts) > 1 else ""
        ops = split_ops(rest)
        self.mods = ""
        if ops:
            last = ops[-1].split()
            ops[-1] = last[0]
            self.mods = " ".join(last[1:])
        self.ops = ops
        op = self.op
        for suf in ("_e32", "_e64", "_dpp", "_sdwa"):
            if op.endswith(suf): op = op[:-len(suf)]
        self.base = op
        self.dpp = self.op.endswith("_dpp") or "row_" in self.mods or "quad_perm" in self.mods
        R = set(); W = set()
        P = [parse_reg(o) for o in ops]
        self.kind = "other"
        self.passes = 0
        if op.startswith("v_mfma"):
            self.kind = "mfma"
            W |= P[0]; R |= P[1] | P[2] | P[3]
            self.srcC = P[3]; self.srcAB = P[1] | P[2]
            self.passes = 8 if "32x32" in op else 4
        elif op.startswith("v_cmp"):
            self.kind = "valu"
            W |= P[0]
            for p in P[1:]: R |= p
            if op.startswith("v_cmpx"): W |= parse_reg("exec")
        elif op.startswith("v_permlane") and "swap" in op:
            self.kind = "valu"; W |= P[0] | P[1]; R |= P[0] | P[1]
        elif op in ("v_readfirstlane_b32", "v_readlane_b32"):
            self.kind = "valu"; W |= P[0]
            for p in P[1:]: R |= p
        elif op.startswith("v_"):
            self.kind = "valu"
            W |= P[0]
            k = 1
            if op in ("v_add_co_u32", "v_sub_co_u32", "v_addc_co_u32", "v_mad_u64_u32"):
                W |= P[1]; k = 2
            for p in P[k:]: R |= p
            if op in ("v_fmac_f32", "v_dot2c_f32_bf16", "v_pk_fmac_f16", "v_writelane_b32") or self.dpp:
                R |= P[0]
            if op == "v_cndmask_b32" and len(ops) == 3: R |= parse_reg("vcc")
        elif op.startswith("buffer_load") or op.startswith("global_load"):
            self.kind = "vmem"
            if "lds" in self.mods.split() or "_lds_" in op:
                for p in P: R |= p
                R |= {("s", "m0")}
                self.kind = "vmem_lds"
            else:
                W |= P[0]
                for p in P[1:]: R |= p
        elif op.startswith("buffer_store") or op.startswith("global_store"):
            self.kind = "vmem_store"
            for p in P: R |= p
            self.data = P[0] if op.startswith("buffer") else P[1]
            self.wide = ("x3" in op or "x4" in op)
        elif op.startswith("buffer_atomic") or op.startswith("global_atomic"):
            self.kind = "vmem_store"
            for p in P: R |= p
            self.data = P[0]; self.wide = False
            if "sc0" in self.mods: W |= P[0]
        elif op.startswith("buffer_") :
            self.kind = "vmem"
        elif op.startswith("ds_read") or op.startswith("ds_bpermute") or op.startswith("ds_swizzle"):
            self.kind = "ds"; W |= P[0]
            for p in P[1:]: R |= p
        elif op.startswith("ds_write"):
            self.kind = "ds"
            for p in P: R |= p
        elif op.startswith("s_load") or op in ("s_memtime", "s_memrealtime"):
            self.kind = "smem"; W |= P[0]
            for p in P[1:]: R |= p
        elif op.startswith("s_cmp") or op.startswith("s_bitcmp"):
            self.kind = "salu"
            for p in P: R |= p
        elif op.startswith("s_cbranch") or op in ("s_branch", "s_endpgm", "s_barrier", "s_waitcnt", "s_nop", "s_setprio", "s_sleep"):
            self.kind = "ctl"
        elif op.startswith("s_"):
            self.kind = "salu"
            W |= P[0] if P else set()
            for p in P[1:]: R |= p
            if "saveexec" in op: W |= parse_reg("exec"); R |= parse_reg("exec")
        else:
            raise ValueError("unknown instruction " + line)
        self.R = R; self.W = W
        self.ws = 1
        if op == "s_nop": self.ws = int(ops[0], 0) + 1

def onlyv(S): return {x for x in S if x[0] in "va"}
def onlys(S): return {x for x in S if x[0] == "s"}

def need(prod, cons):
    n = 0; why = ""
    def up(k, w):
        nonlocal n, why
        if k > n: n = k; why = w
    pv = onlyv(prod.W)
    if prod.kind == "valu":
        if cons.kind == "mfma" and pv & cons.R: up(2, "valu->mfma")
        if cons.kind == "valu" and cons.base.startswith("v_permlane") and pv & cons.R: up(2, "valu->permlane")
        if cons.kind == "valu" and cons.dpp and pv & cons.R: up(2, "valu->dpp")
        if cons.base in ("v_readfirstlane_b32", "v_readlane_b32") and pv & cons.R: up(1, "valu->readlane")
        if prod.base in TRANS and cons.kind == "valu" and cons.base not in TRANS and pv & cons.R: up(1, "trans->valu")
        if prod.base in TRANS and cons.kind in ("vmem_store", "ds") and pv & cons.R: up(1, "trans->mem(safe)")
        ps = onlys(prod.W)
        if ps:
            if cons.kind in ("vmem", "vmem_lds", "vmem_store") and ps & cons.R: up(5, "valu sgpr->vmem")
            if cons.kind == "valu" and ps & cons.R: up(2, "valu sgpr->valu")
            if cons.kind in ("salu",) and (ps - parse_reg("vcc")) & cons.R: up(1, "valu sgpr->salu(safe)")
            ex = parse_reg("exec")
            if ps & ex:
                if cons.kind == "mfma": up(4, "valu exec->mfma")
                if cons.kind == "valu" and cons.dpp: up(5, "valu exec->dpp")
                if cons.base.startswith("v_permlane") or cons.base in ("v_readfirstlane_b32", "v_readlane_b32"): up(4, "cmpx->lane")
    if prod.base.startswith("v_dot"):
        if cons.base == prod.base:
            ab = set()
            for o in cons.ops[1:3]: ab |= parse_reg(o)
            if pv & ab: up(3, "dot->dot AB")
        elif pv & (cons.R | onlyv(cons.W)): up(3, "dot->other")
    if prod.kind == "salu":
        if ("s", "m0") in prod.W and cons.kind == "vmem_lds": up(1, "m0->ldsdma")
    if prod.kind == "mfma":
        D = prod.W
        big = prod.passes == 8
        if cons.kind == "mfma":
            if D & cons.srcAB: up(12 if big else 8, "mfma D->AB")
            if D & cons.srcC and not (D == cons.srcC and prod.passes == cons.passes): up(10 if big else 6, "mfma D->C overlap")
        elif cons.kind == "valu":
            if D & (cons.R | cons.W): up(12 if big else 8, "mfma D->valu")
            if prod.srcC & cons.W: up(7 if big else 3, "mfma C WAR valu")
        elif cons.kind in ("vmem", "vmem_store", "ds", "vmem_lds"):
            if D & (cons.R | onlyv(cons.W)): up(12 if big else 8, "mfma D->mem")
    if prod.kind == "vmem_store" and prod.wide:
        if onlyv(cons.W) & prod.data: up(2 if cons.kind == "valu" else 1, "store data WAR")
    return n, why

def check(lines):
    ins = []; labels = {}
    for l in lines:
        if l.startswith(";") or l.startswith("."): continue
        if l.endswith(":"):
            labels[l[:-1]] = len(ins); continue
        ins.append(Ins(l))
    n = len(ins)
    preds = [[] for _ in range(n + 1)]
    for i, x in enumerate(ins):
        if x.base == "s_endpgm": continue
        if x.base == "s_branch":
            preds[labels[x.ops[0]]].append(i); continue
        if x.base.startswith("s_cbranch"):
            preds[labels[x.ops[0]]].append(i)
        preds[i + 1].append(i)
    errs = []
    MAXD = 13
    for j, c in enumerate(ins):
        if c.kind in ("ctl",): continue
        stack = [(p, 0) for p in preds[j]]
        seen = {}
        while stack:
            i, d = stack.pop()
            if d >= MAXD: continue
            if seen.get(i, 99) <= d: continue
            seen[i] = d
            p = ins[i]
            k, why = need(p, c)
            if k > d:
                errs.append(f"HAZARD {why}: need {k} have {d}\n   P[{i}]: {p.line}\n   C[{j}]: {c.line}")
            for q in preds[i]:
                stack.append((q, d + p.ws))
    return errs
```

```python
from asmlib import *
from layout import *
from gen_k24 import prologue, kd, srd
from gen_k3 import f2h, LOG2E

SLOT = 34816
PREP = 4*SLOT
K1_LDS = 163840

def gen_k1(A, name):
    vXg, vWg0, vWg1 = 1, 2, 3
    vXb0, vXb1, vWb = 4, 5, 6
    vXr0, vXr1, vWr = 7, 8, 9
    vOne = 10
    vT0, vT1, vT2, vT3 = 11, 12, 13, 14
    ST = 16
    Q = 24; K = 44; V = 64
    SET0 = 84; SET1 = 116
    lane = 15
    sW, sRB, sHG, sC, sSlot, sT, sT2 = 20, 21, 22, 23, 24, 25, 26
    sX0, sX1, sX2 = 27, 28, 29
    sWa = 30
    sRole, sPh = 36, 37
    sMX = 38
    sMW = 39
    sEx = 52
    prologue(A, name)
    A("s_load_dwordx4 s[4:7], s[0:1], 0")
    A("s_load_dwordx2 s[16:17], s[0:1], 72")
    A("s_load_dwordx2 s[40:41], s[0:1], 16")
    A("s_load_dwordx4 s[44:47], s[0:1], 32")
    A("s_load_dwordx2 s[48:49], s[0:1], 48")
    A(f"v_lshrrev_b32 v{vT0}, 6, v0")
    A(f"v_and_b32 v{lane}, 63, v0")
    A(f"v_readfirstlane_b32 s{sW}, v{vT0}")
    A(f"s_and_b32 s{sRB}, s2, 7\ns_lshl_b32 s{sRB}, s{sRB}, 2\ns_bfe_u32 s{sT}, s2, 0x20003\ns_add_u32 s{sRB}, s{sRB}, s{sT}")
    A(f"s_lshr_b32 s{sHG}, s2, 5")
    A(f"v_lshrrev_b32 v{vT0}, 3, v{lane}")
    A(f"v_and_b32 v{vT1}, 7, v{lane}")
    A(f"v_xor_b32 v{vT2}, v{vT1}, v{vT0}")
    A(f"v_lshlrev_b32 v{vT2}, 4, v{vT2}")
    A(f"v_lshl_add_u32 v{vXg}, v{vT0}, 10, v{vT2}")
    A(f"v_bfe_u32 v{vT2}, v{vT0}, 1, 1")
    A(f"v_lshrrev_b32 v{vT3}, 1, v{vT1}")
    A(f"v_xor_b32 v{vT2}, v{vT2}, v{vT3}")
    A(f"v_lshlrev_b32 v{vT2}, 5, v{vT2}")
    A(f"v_and_b32 v{vT3}, 1, v{vT1}")
    A(f"v_lshl_add_u32 v{vT2}, v{vT3}, 4, v{vT2}")
    A(f"v_mul_u32_u24 v{vT3}, 3072, v{vT0}")
    A(f"v_add_u32 v{vWg0}, v{vT2}, v{vT3}")
    A(f"v_xor_b32 v{vWg1}, 64, v{vWg0}")
    A(f"s_lshl_b32 s{sT}, s{sRB}, 16")
    A(f"s_lshl_b32 s{sT2}, s{sW}, 13")
    A(f"s_add_u32 s{sX1}, s{sT}, s{sT2}")
    A(f"s_add_u32 s{sX1}, s{sX1}, {(32-16)*1024}")
    A(f"s_add_u32 s{sX2}, s{sX1}, {32*1024}")
    A(f"s_sub_u32 s{sX0}, s{sX1}, {32*1024}")
    A(f"s_cmp_eq_u32 s{sRB}, 0\ns_cselect_b32 s54, 1, 0\ns_cmp_lt_u32 s{sW}, 2\ns_cselect_b32 s55, s54, 0")
    A(f"s_cmp_eq_u32 s55, 1\ns_cselect_b32 s{sX0}, s{sT2}, s{sX0}")
    A(f"s_mul_i32 s{sT}, s{sW}, {16*3072}\ns_lshl_b32 s{sT2}, s{sHG}, 7\ns_add_u32 s{sWa}, s{sT}, s{sT2}")
    A(f"s_add_u32 s{sWa+1}, s{sWa}, {8*3072-1024}")
    for m in (1, 2):
        A(f"s_add_u32 s{sWa+2*m}, s{sWa}, {m*1024}\ns_add_u32 s{sWa+2*m+1}, s{sWa+1}, {m*1024}")
    A(f"s_lshl_b32 s{sMX}, s{sW}, 10")
    A(f"s_lshl_b32 s{sMW}, s{sW}, 11\ns_add_u32 s{sMW}, s{sMW}, 10240")
    A(f"s_cmp_eq_u32 s{sW}, 0\ns_cselect_b32 s{sEx}, 0xffffff00, -1\ns_mov_b32 s{sEx+1}, -1")
    A(f"s_and_b32 s{sRole}, s{sW}, 1\ns_lshr_b32 s{sPh}, s{sW}, 1")
    A(f"v_and_b32 v{vT0}, 15, v{lane}")
    A(f"v_lshrrev_b32 v{vT1}, 4, v{lane}")
    A(f"v_and_b32 v{vT2}, 7, v{vT0}\nv_xor_b32 v{vT2}, v{vT2}, v{vT1}\nv_lshlrev_b32 v{vT2}, 4, v{vT2}")
    A(f"v_lshl_add_u32 v{vXb0}, v{vT0}, 7, v{vT2}")
    A(f"v_xor_b32 v{vXb1}, 64, v{vXb0}")
    A(f"v_lshrrev_b32 v{vT2}, 2, v{vT0}\nv_lshl_add_u32 v{vT2}, v{vT1}, 3, v{vT2}\nv_lshlrev_b32 v{vT2}, 7, v{vT2}")
    A(f"v_bfe_u32 v{vT3}, v{vT0}, 3, 1\nv_and_b32 v{vWb}, 1, v{vT1}\nv_lshl_or_b32 v{vT3}, v{vWb}, 1, v{vT3}")
    A(f"v_xor_b32 v{vT3}, s{sW}, v{vT3}\nv_lshl_add_u32 v{vT2}, v{vT3}, 5, v{vT2}")
    A(f"v_and_b32 v{vT3}, 3, v{vT0}\nv_lshl_add_u32 v{vT2}, v{vT3}, 3, v{vT2}\nv_add_u32 v{vWb}, 10240, v{vT2}")
    A(f"v_mov_b32 v{vOne}, 0x3f803f80")
    A(f"v_lshrrev_b32 v{vT0}, 3, v0\nv_mul_u32_u24 v{vT0}, {SLOT}, v{vT0}\nv_and_b32 v{vT1}, 7, v0\nv_lshl_add_u32 v{vT0}, v{vT1}, 4, v{vT0}")
    for i in range(4): A(f"v_mov_b32 v{SET0+i}, v{vOne}")
    A(f"v_cmp_gt_u32 vcc, 32, v0\ns_and_saveexec_b64 s[56:57], vcc\ns_cbranch_execz L_{name}_noinit")
    A(f"ds_write_b128 v{vT0}, v[{SET0}:{SET0+3}]")
    A(f"L_{name}_noinit:\ns_mov_b64 exec, s[56:57]")
    A("s_waitcnt lgkmcnt(0)")
    srd(A, 8, 4, 5, S*D*2)
    srd(A, 12, 6, 7, D*3*D*2)
    A("s_and_b32 s17, s17, 0xffff\ns_mov_b32 s18, " + hex(WS_END) + "\ns_mov_b32 s19, 0x20000")
    def dma_chunk(tag):
        A(f"s_add_u32 m0, s{sSlot}, s{sMX}")
        A(f"s_mov_b64 exec, s[{sEx}:{sEx+1}]")
        A(f"buffer_load_dwordx4 v{vXg}, s[8:11], s{sX0} offen lds")
        A(f"s_mov_b64 exec, -1")
        A(f"s_add_u32 m0, m0, 4096\ns_nop 0")
        A(f"buffer_load_dwordx4 v{vXg}, s[8:11], s{sX1} offen lds")
        for m in range(3):
            A(f"s_add_u32 s{sT}, s{sSlot}, s{sMW}\ns_add_u32 m0, s{sT}, {m*8192}\ns_nop 0")
            A(f"buffer_load_dwordx4 v{vWg0}, s[12:15], s{sWa+2*m} offen lds")
            A(f"buffer_load_dwordx4 v{vWg1}, s[12:15], s{sWa+2*m+1} offen offset:1024 lds")
        A(f"s_cmp_ge_u32 s{sW}, 2\ns_cbranch_scc1 L_{name}_x3_{tag}")
        A(f"s_add_u32 s{sT}, s{sSlot}, s{sMX}\ns_add_u32 m0, s{sT}, 8192\ns_nop 0")
        A(f"buffer_load_dwordx4 v{vXg}, s[8:11], s{sX2} offen lds")
        A(f"L_{name}_x3_{tag}:")
        A(f"v_add_u32 v{vXg}, 128, v{vXg}\nv_add_u32 v{vWg0}, {64*3072}, v{vWg0}\nv_add_u32 v{vWg1}, {64*3072}, v{vWg1}")
    for c in range(3):
        A(f"s_mov_b32 s{sSlot}, {c*SLOT}")
        dma_chunk(f"p{c}")
    sPq, sPr = 58, 59
    A(f"s_mul_i32 s{sPq}, s2, 2341\ns_lshr_b32 s{sPq}, s{sPq}, 16\ns_mul_i32 s{sT}, s{sPq}, 28\ns_sub_u32 s{sPr}, s2, s{sT}")
    vP0 = vT0; vP1 = vT1
    A(f"v_lshrrev_b32 v{vT2}, 3, v{lane}\nv_and_b32 v{vT3}, 7, v{lane}\nv_lshlrev_b32 v{vT3}, 4, v{vT3}")
    A(f"v_mad_u32_u24 v{vP0}, v{vT2}, s60, v{vT3}") if False else None
    A(f"s_cmp_ge_u32 s2, 224\ns_cbranch_scc1 L_{name}_prepwo")
    A("s_mov_b32 s60, s44\ns_and_b32 s61, s45, 0xffff\ns_mov_b32 s62, " + hex(D*F*2) + "\ns_mov_b32 s63, 0x20000")
    A("s_mov_b32 s64, s46\ns_and_b32 s65, s47, 0xffff\ns_mov_b32 s66, " + hex(D*F*2) + "\ns_mov_b32 s67, 0x20000")
    A("s_mov_b32 s68, s48\ns_and_b32 s69, s49, 0xffff\ns_mov_b32 s70, " + hex(D*F*2) + "\ns_mov_b32 s71, 0x20000")
    A(f"v_mul_u32_u24 v{vP0}, 3584, v{vT2}\nv_add_u32 v{vP0}, v{vP0}, v{vT3}")
    A(f"v_lshl_add_u32 v{vP1}, v{vT2}, 10, v{vT3}")
    A(f"s_lshl_b32 s{sT}, s{sPq}, 6\ns_lshl_b32 s{sT2}, s{sW}, 4\ns_add_u32 s{sT}, s{sT}, s{sT2}\ns_mul_i32 s{sT}, s{sT}, 3584")
    A(f"s_lshl_b32 s{sT2}, s{sPr}, 7\ns_add_u32 s72, s{sT}, s{sT2}\ns_add_u32 s73, s72, {8*3584-1024}")
    A(f"s_lshl_b32 s{sT}, s{sW}, 11\ns_add_u32 m0, s{sT}, {PREP}\ns_nop 0")
    A(f"buffer_load_dwordx4 v{vP0}, s[60:63], s72 offen lds\nbuffer_load_dwordx4 v{vP0}, s[60:63], s73 offen offset:1024 lds")
    A(f"s_add_u32 m0, s{sT}, {PREP+8192}\ns_nop 0")
    A(f"buffer_load_dwordx4 v{vP0}, s[64:67], s72 offen lds\nbuffer_load_dwordx4 v{vP0}, s[64:67], s73 offen offset:1024 lds")
    A(f"s_lshl_b32 s74, s{sPr}, 6\ns_lshl_b32 s{sT2}, s{sW}, 4\ns_add_u32 s74, s74, s{sT2}\ns_lshl_b32 s74, s74, 10")
    A(f"s_lshl_b32 s{sT2}, s{sPq}, 7\ns_add_u32 s74, s74, s{sT2}\ns_add_u32 s75, s74, {8*1024-1024}")
    A(f"s_add_u32 m0, s{sT}, {PREP+16384}\ns_nop 0")
    A(f"buffer_load_dwordx4 v{vP1}, s[68:71], s74 offen lds\nbuffer_load_dwordx4 v{vP1}, s[68:71], s75 offen offset:1024 lds")
    A(f"s_branch L_{name}_prepdone")
    A(f"L_{name}_prepwo:")
    A("s_mov_b32 s60, s40\ns_and_b32 s61, s41, 0xffff\ns_mov_b32 s62, " + hex(D*D*2) + "\ns_mov_b32 s63, 0x20000")
    A(f"v_lshl_add_u32 v{vP1}, v{vT2}, 10, v{vT3}")
    A(f"s_sub_u32 s76, s2, 224\ns_lshl_b32 s76, s76, 1")
    A(f"s_and_b32 s74, s76, 7\ns_lshl_b32 s74, s74, 6\ns_lshl_b32 s{sT2}, s{sW}, 4\ns_add_u32 s74, s74, s{sT2}\ns_lshl_b32 s74, s74, 10")
    A(f"s_lshr_b32 s{sT2}, s76, 3\ns_lshl_b32 s{sT2}, s{sT2}, 7\ns_add_u32 s74, s74, s{sT2}\ns_add_u32 s75, s74, {8*1024-1024}")
    A(f"s_lshl_b32 s{sT}, s{sW}, 11\ns_add_u32 m0, s{sT}, {PREP}\ns_nop 0")
    A(f"buffer_load_dwordx4 v{vP1}, s[60:63], s74 offen lds\nbuffer_load_dwordx4 v{vP1}, s[60:63], s75 offen offset:1024 lds")
    A(f"s_add_u32 s74, s74, 65536\ns_add_u32 s75, s75, 65536")
    A(f"s_add_u32 m0, s{sT}, {PREP+8192}\ns_nop 0")
    A(f"buffer_load_dwordx4 v{vP1}, s[60:63], s74 offen lds\nbuffer_load_dwordx4 v{vP1}, s[60:63], s75 offen offset:1024 lds")
    A(f"s_add_u32 m0, s{sT}, {PREP+16384}\ns_nop 0")
    A(f"buffer_load_dwordx4 v{vP1}, s[60:63], s74 offen lds\nbuffer_load_dwordx4 v{vP1}, s[60:63], s75 offen offset:1024 lds")
    A(f"L_{name}_prepdone:")
    for r in list(range(Q, V+20)) + list(range(ST, ST+5)): A(f"v_mov_b32 v{r}, 0")
    A("s_waitcnt vmcnt(22) lgkmcnt(0)\ns_barrier")
    A(f"v_mov_b32 v{vXr0}, v{vXb0}\nv_mov_b32 v{vXr1}, v{vXb1}\nv_mov_b32 v{vWr}, v{vWb}")
    def reads(SETB, ks):
        L = []
        vx = vXr0 if ks == 0 else vXr1
        for m in range(3):
            for t2 in range(2):
                r = SETB + 20 + 4*m + 2*t2
                L.append(f"ds_read_b64_tr_b16 v[{r}:{r+1}], v{vWr} offset:{m*8192 + ks*4096 + t2*512}")
        for t in range(5):
            r = SETB + 4*t
            L.append(f"ds_read_b128 v[{r}:{r+3}], v{vx} offset:{t*2048}")
        return L
    def mfmas(SETB):
        L = []
        for t in range(5):
            x = f"v[{SETB+4*t}:{SETB+4*t+3}]"
            for m, acc in enumerate((Q, K, V)):
                w = f"v[{SETB+20+4*m}:{SETB+20+4*m+3}]"
                d = f"v[{acc+4*t}:{acc+4*t+3}]"
                L.append(f"v_mfma_f32_16x16x32_bf16 {d}, {w}, {x}, {d}" if m < 2 else f"v_mfma_f32_16x16x32_bf16 {d}, {x}, {w}, {d}")
        return L
    def phase(SETcur, rd, ph, tag):
        mf = mfmas(SETcur)
        A("s_waitcnt lgkmcnt(0)")
        for i, ins in enumerate(mf):
            A(ins)
            if i < len(rd): A(rd[i])
        A(f"s_cmp_lg_u32 s{sPh}, {ph}\ns_cbranch_scc1 L_{name}_st_{tag}_done")
        A(f"s_cmp_eq_u32 s{sRole}, 1\ns_cbranch_scc1 L_{name}_st_{tag}_sq")
        for j in range(4):
            for t in range(5):
                A(f"v_dot2c_f32_bf16 v{ST+t}, v{SETcur+4*t+j}, v{vOne}")
        A(f"s_branch L_{name}_st_{tag}_done")
        A(f"L_{name}_st_{tag}_sq:")
        for j in range(4):
            for t in range(5):
                A(f"v_dot2c_f32_bf16 v{ST+t}, v{SETcur+4*t+j}, v{SETcur+4*t+j}")
        A(f"L_{name}_st_{tag}_done:")
    for ins in reads(SET0, 0): A(ins)
    A(f"s_mov_b32 s{sC}, 0\ns_mov_b32 s{sSlot}, {3*SLOT}")
    A(f"s_mov_b32 s77, 0")
    A(f"L_{name}_loop:")
    phase(SET0, reads(SET1, 1), 0, "a")
    A(f"s_waitcnt vmcnt(14)\ns_cmp_lt_u32 s{sC}, 2\ns_cbranch_scc1 L_{name}_sync")
    A(f"s_waitcnt vmcnt(8)\ns_cmp_lt_u32 s{sC}, 6\ns_cbranch_scc1 L_{name}_sync")
    A(f"s_waitcnt vmcnt(0)\nL_{name}_sync:")
    A("s_waitcnt lgkmcnt(0)\ns_barrier")
    A(f"s_cmp_ge_u32 s{sC}, 5\ns_cbranch_scc1 L_{name}_nodma")
    dma_chunk("l")
    A(f"s_add_u32 s{sSlot}, s{sSlot}, {SLOT}\ns_cmp_eq_u32 s{sSlot}, {4*SLOT}\ns_cselect_b32 s{sSlot}, 0, s{sSlot}")
    A(f"L_{name}_nodma:")
    A(f"s_add_u32 s77, s77, {SLOT}\ns_cmp_eq_u32 s77, {4*SLOT}\ns_cselect_b32 s77, 0, s77")
    A(f"v_add_u32 v{vXr0}, s77, v{vXb0}\nv_add_u32 v{vXr1}, s77, v{vXb1}\nv_add_u32 v{vWr}, s77, v{vWb}")
    phase(SET1, reads(SET0, 0), 1, "b")
    A(f"s_add_u32 s{sC}, s{sC}, 1\ns_cmp_lt_u32 s{sC}, 8\ns_cbranch_scc1 L_{name}_loop")
    A("s_waitcnt lgkmcnt(0)")
    m16, g4 = SET0, SET0+1
    A(f"v_and_b32 v{m16}, 15, v{lane}\nv_lshrrev_b32 v{g4}, 4, v{lane}")
    T = SET0 + 4
    for t in range(5): A(f"v_mov_b32 v{T+t}, v{ST+t}")
    A("s_nop 0")
    for t in range(5): A(f"v_permlane16_swap_b32 v{ST+t}, v{T+t}")
    A("s_nop 0")
    for t in range(5): A(f"v_add_f32 v{ST+t}, v{ST+t}, v{T+t}")
    for t in range(5): A(f"v_mov_b32 v{T+t}, v{ST+t}")
    A("s_nop 0")
    for t in range(5): A(f"v_permlane32_swap_b32 v{ST+t}, v{T+t}")
    A("s_nop 0")
    for t in range(5): A(f"v_add_f32 v{ST+t}, v{ST+t}, v{T+t}")
    SB = SLOT
    vSa = SET0 + 2
    A(f"s_mul_i32 s{sT}, s{sW}, 320\ns_add_u32 s{sT}, s{sT}, {SB}")
    A(f"v_lshlrev_b32 v{vSa}, 2, v{m16}\nv_add_u32 v{vT0}, s{sT}, v{vSa}")
    for t in range(5): A(f"ds_write_b32 v{vT0}, v{ST+t} offset:{t*64}")
    A("s_waitcnt lgkmcnt(0)\ns_barrier")
    A(f"v_add_u32 v{vT0}, {SB}, v{vSa}")
    R = SET0 + 12
    for w in range(4):
        for t in range(5): A(f"ds_read_b32 v{R+5*w+t}, v{vT0} offset:{w*320+t*64}")
    CQ, CK, CV = SET1, SET1+4, SET1+8
    for r in range(4):
        A(f"v_mov_b32_dpp v{CQ+r}, v{Q+r} row_newbcast:0 row_mask:0xf bank_mask:0xf")
        A(f"v_mov_b32_dpp v{CK+r}, v{K+r} row_newbcast:0 row_mask:0xf bank_mask:0xf")
    A(f"v_mov_b32 v{CV}, v{V}\nv_mov_b32 v{CV+1}, v{V}\ns_nop 1\nv_permlane16_swap_b32 v{CV}, v{CV+1}")
    A(f"s_nop 0\nv_mov_b32 v{CV+1}, v{CV}\ns_nop 1\nv_permlane32_swap_b32 v{CV}, v{CV+1}")
    A("s_waitcnt lgkmcnt(0)")
    RS, MR = SET1 + 10, SET1 + 16
    for t in range(5):
        A(f"v_add_f32 v{R+t}, v{R+t}, v{R+10+t}\nv_add_f32 v{R+5+t}, v{R+5+t}, v{R+15+t}")
    for t in range(5):
        A(f"v_mul_f32 v{R+t}, {f2h(1/512)}, v{R+t}\nv_mul_f32 v{R+5+t}, {f2h(1/512)}, v{R+5+t}")
    for t in range(5):
        A(f"v_fma_f32 v{R+5+t}, -v{R+t}, v{R+t}, v{R+5+t}")
    for t in range(5):
        A(f"v_add_f32 v{R+5+t}, {f2h(1e-5)}, v{R+5+t}")
    for t in range(5):
        A(f"v_rsq_f32 v{RS+t}, v{R+5+t}")
    A("s_nop 0")
    for t in range(5):
        A(f"v_mul_f32 v{MR+t}, v{R+t}, v{RS+t}")
    A(f"s_mul_i32 s{sT}, s{sW}, 640\ns_add_u32 s{sT}, s{sT}, {SB+1280}")
    A(f"v_add_u32 v{vT0}, s{sT}, v{vSa}")
    for t in range(5):
        A(f"ds_write_b32 v{vT0}, v{RS+t} offset:{t*64}\nds_write_b32 v{vT0}, v{MR+t} offset:{320+t*64}")
    A(f"v_lshlrev_b32 v{vT1}, 4, v{g4}\nv_add_u32 v{vT1}, s{sT}, v{vT1}")
    A("s_waitcnt lgkmcnt(0)")
    RV = R
    MV = SET1 + 24
    for t in range(5):
        A(f"ds_read_b128 v[{RV+4*t}:{RV+4*t+3}], v{vT1} offset:{t*64}")
        A(f"ds_read_b128 v[{MV+4*t}:{MV+4*t+3}], v{vT1} offset:{320+t*64}")
    QP, KP, VP = 160, 168, 178
    TM = 188
    def normqk(acc, cs, t, dst):
        for r in range(4): A(f"v_mul_f32 v{TM+r}, v{MR+t}, v{cs+r}")
        for r in range(4): A(f"v_fma_f32 v{TM+r}, v{acc+4*t+r}, v{RS+t}, -v{TM+r}")
        A(f"v_cvt_pk_bf16_f32 v{dst}, v{TM}, v{TM+1}\nv_cvt_pk_bf16_f32 v{dst+1}, v{TM+2}, v{TM+3}")
    for t in range(5): normqk(K, CK, t, KP+2*t)
    for t in range(1, 5): normqk(Q, CQ, t, QP+2*(t-1))
    A("s_waitcnt lgkmcnt(0)")
    for t in range(5):
        for r in range(4): A(f"v_mul_f32 v{TM+r}, v{MV+4*t+r}, v{CV}")
        for r in range(4): A(f"v_fma_f32 v{TM+r}, v{V+4*t+r}, v{RV+4*t+r}, -v{TM+r}")
        A(f"v_cvt_pk_bf16_f32 v{VP+2*t}, v{TM}, v{TM+1}\nv_cvt_pk_bf16_f32 v{VP+2*t+1}, v{TM+2}, v{TM+3}")
    A(f"v_and_b32 v{vT0}, 1, v{m16}\nv_cmp_eq_u32 s[80:81], 1, v{vT0}")
    A(f"v_lshlrev_b32 v{vT3}, 4, v{vT0}")
    A(f"v_lshl_add_u32 v{vT1}, v{g4}, 2, v{vT0}")
    A(f"v_cmp_le_u32 s[82:83], v{vT1}, v{m16}\nv_add_u32 v{vT1}, 2, v{vT1}\nv_cmp_le_u32 s[84:85], v{vT1}, v{m16}")
    A(f"s_cmp_eq_u32 s{sRB}, 0\ns_cselect_b32 s86, -1, 0\ns_mov_b32 s87, s86")
    ONES = Q
    for i in range(4): A(f"v_mov_b32 v{ONES+i}, v{vOne}")
    NEG = vT2
    A(f"v_mov_b32 v{NEG}, {f2h(-1e9)}")
    SC = 0.25 * LOG2E
    A(f"s_mov_b32 s88, {f2h(SC)}")
    vO = vT0
    A(f"v_lshrrev_b32 v{vT1}, 1, v{g4}\nv_lshlrev_b32 v{vT1}, 9, v{vT1}\nv_lshl_add_u32 v{vO}, v{m16}, 4, v{vT1}")
    A(f"v_and_b32 v{vT1}, 1, v{g4}\nv_lshl_add_u32 v{vO}, v{vT1}, 3, v{vO}")
    A(f"s_lshl_b32 s89, s{sRB}, 16\ns_lshl_b32 s{sT}, s{sHG}, 12\ns_add_u32 s89, s89, s{sT}\ns_lshl_b32 s{sT}, s{sW}, 10\ns_add_u32 s89, s89, s{sT}\ns_add_u32 s89, s89, {hex(WS_O)}")
    SCU = lambda t: K + 4*(t-1)
    SPR = lambda t: V + 4*(t-1)
    E0 = lambda t: 196 + 4*(t-1)
    PB = lambda t: 212 + 4*(t-1)
    for t in range(1, 5):
        q = QP + 2*(t-1)
        A(f"v_mfma_f32_16x16x16_bf16 v[{SCU(t)}:{SCU(t)+3}], v[{KP+2*t}:{KP+2*t+1}], v[{q}:{q+1}], 0")
        A(f"v_mfma_f32_16x16x16_bf16 v[{SPR(t)}:{SPR(t)+3}], v[{KP+2*t-2}:{KP+2*t-1}], v[{q}:{q+1}], 0")
    A("s_nop 4")
    for t in range(1, 5):
        c, p, e = SCU(t), SPR(t), E0(t)
        A(f"v_cndmask_b32 v{c}, v{c}, v{c+1}, s[80:81]\nv_cndmask_b32 v{c+2}, v{c+2}, v{c+3}, s[80:81]")
        A(f"v_cndmask_b32 v{p}, v{p}, v{p+1}, s[80:81]\nv_cndmask_b32 v{p+2}, v{p+2}, v{p+3}, s[80:81]")
        if t == 1:
            A(f"v_cndmask_b32 v{p}, v{p}, v{NEG}, s[86:87]\nv_cndmask_b32 v{p+2}, v{p+2}, v{NEG}, s[86:87]")
        A(f"v_cndmask_b32 v{e}, v{p}, v{c}, s[82:83]\nv_cndmask_b32 v{e+1}, v{p+2}, v{c+2}, s[84:85]")
        A(f"v_max_f32 v{e+2}, v{e}, v{e+1}")
        A(f"v_mov_b32 v{e+3}, v{e+2}")
    A("s_nop 0")
    for t in range(1, 5): A(f"v_permlane16_swap_b32 v{E0(t)+2}, v{E0(t)+3}")
    A("s_nop 0")
    for t in range(1, 5): A(f"v_max_f32 v{E0(t)+2}, v{E0(t)+2}, v{E0(t)+3}")
    for t in range(1, 5): A(f"v_mov_b32 v{E0(t)+3}, v{E0(t)+2}")
    A("s_nop 0")
    for t in range(1, 5): A(f"v_permlane32_swap_b32 v{E0(t)+2}, v{E0(t)+3}")
    A("s_nop 0")
    for t in range(1, 5): A(f"v_max_f32 v{E0(t)+2}, v{E0(t)+2}, v{E0(t)+3}")
    for t in range(1, 5):
        e = E0(t)
        A(f"v_sub_f32 v{e}, v{e}, v{e+2}\nv_sub_f32 v{e+1}, v{e+1}, v{e+2}")
    for t in range(1, 5):
        e = E0(t)
        A(f"v_mul_f32 v{e}, s88, v{e}\nv_mul_f32 v{e+1}, s88, v{e+1}")
    for t in range(1, 5):
        e = E0(t)
        A(f"v_exp_f32 v{e}, v{e}\nv_exp_f32 v{e+1}, v{e+1}")
    for t in range(1, 5):
        e = E0(t)
        A(f"v_cvt_pk_bf16_f32 v{e}, v{e}, 0\nv_cvt_pk_bf16_f32 v{e+1}, v{e+1}, 0")
    for t in range(1, 5):
        e = E0(t)
        A(f"v_lshlrev_b32 v{e}, v{vT3}, v{e}\nv_lshlrev_b32 v{e+1}, v{vT3}, v{e+1}")
    for t in range(1, 5):
        e, pb = E0(t), PB(t)
        A(f"v_cndmask_b32 v{pb}, v{e}, 0, s[82:83]\nv_cndmask_b32 v{pb+1}, v{e+1}, 0, s[84:85]")
        A(f"v_cndmask_b32 v{pb+2}, 0, v{e}, s[82:83]\nv_cndmask_b32 v{pb+3}, 0, v{e+1}, s[84:85]")
    A("s_nop 0")
    for t in range(1, 5):
        pb = PB(t)
        A(f"v_mfma_f32_16x16x32_bf16 v[{SCU(t)}:{SCU(t)+3}], v[{VP+2*t-2}:{VP+2*t+1}], v[{pb}:{pb+3}], 0")
        A(f"v_mfma_f32_16x16x32_bf16 v[{SPR(t)}:{SPR(t)+3}], v[{ONES}:{ONES+3}], v[{pb}:{pb+3}], 0")
    A("s_nop 4")
    for t in range(1, 5): A(f"v_rcp_f32 v{E0(t)}, v{SPR(t)}")
    A("s_nop 0")
    for t in range(1, 5):
        o = SCU(t)
        for r in range(4): A(f"v_mul_f32 v{o+r}, v{o+r}, v{E0(t)}")
        A(f"v_cvt_pk_bf16_f32 v{o}, v{o}, v{o+1}\nv_cvt_pk_bf16_f32 v{o+1}, v{o+2}, v{o+3}")
        off = ((t-1) & 1) * 256
        if t == 3: A("s_add_u32 s89, s89, 32768")
        A(f"buffer_store_dwordx2 v[{o}:{o+1}], v{vO}, s[16:19], s89 offen offset:{off}")
    i16, Gh, Ghf = SET0, SET0+1, SET0+2
    A(f"v_and_b32 v{i16}, 15, v{lane}\nv_bfe_u32 v{Gh}, v{lane}, 4, 1\nv_lshrrev_b32 v{Ghf}, 5, v{lane}")
    vPa, vPb = SET0+3, SET0+4
    A(f"v_lshrrev_b32 v{vPa}, 2, v{i16}\nv_lshlrev_b32 v{vPa}, 7, v{vPa}\nv_and_b32 v{vPb}, 3, v{i16}\nv_lshl_add_u32 v{vPa}, v{vPb}, 3, v{vPa}")
    vLn = SET0 + 5
    A(f"v_lshlrev_b32 v{vLn}, 4, v{lane}")
    FR = SET0 + 8
    A(f"s_cmp_ge_u32 s2, 224\ns_cbranch_scc1 L_{name}_fwo")
    A(f"v_lshlrev_b32 v{vPb}, 13, v{Gh}\nv_lshl_add_u32 v{vPb}, v{Ghf}, 9, v{vPb}\nv_add_u32 v{vPb}, v{vPb}, v{vPa}")
    A(f"s_lshl_b32 s{sT}, s{sW}, 5\ns_add_u32 s{sT}, s{sT}, {PREP}\nv_add_u32 v{vPb}, s{sT}, v{vPb}")
    for ks in range(4):
        A(f"ds_read_b64_tr_b16 v[{FR+4*ks}:{FR+4*ks+1}], v{vPb} offset:{ks*2048}")
        A(f"ds_read_b64_tr_b16 v[{FR+4*ks+2}:{FR+4*ks+3}], v{vPb} offset:{ks*2048+1024}")
    A(f"v_lshlrev_b32 v{vPb+10+24}, 5, v{Gh}") if False else None
    vPd = SET0 + 6
    A(f"v_lshlrev_b32 v{vPd}, 5, v{Gh}\nv_lshl_add_u32 v{vPd}, v{Ghf}, 9, v{vPd}\nv_add_u32 v{vPd}, v{vPd}, v{vPa}")
    A(f"s_and_b32 s{sT}, s{sW}, 1\ns_lshl_b32 s{sT}, s{sT}, 6\ns_lshr_b32 s{sT2}, s{sW}, 1\ns_lshl_b32 s{sT2}, s{sT2}, 12\ns_add_u32 s{sT}, s{sT}, s{sT2}\ns_add_u32 s{sT}, s{sT}, {PREP+16384}")
    A(f"v_add_u32 v{vPd}, s{sT}, v{vPd}")
    for k2 in range(2):
        A(f"ds_read_b64_tr_b16 v[{FR+16+4*k2}:{FR+16+4*k2+1}], v{vPd} offset:{k2*2048}")
        A(f"ds_read_b64_tr_b16 v[{FR+16+4*k2+2}:{FR+16+4*k2+3}], v{vPd} offset:{k2*2048+1024}")
    A(f"s_lshl_b32 s{sT}, s{sPr}, 2\ns_add_u32 s{sT}, s{sT}, s{sW}\ns_mov_b32 s90, s{sT}\ns_lshl_b32 s{sT}, s{sT}, 15\ns_lshl_b32 s{sT2}, s{sPq}, 12\ns_add_u32 s{sT}, s{sT}, s{sT2}\ns_add_u32 s91, s{sT}, {hex(WS_WGU)}")
    A(f"s_lshl_b32 s{sT}, s{sPq}, 1\ns_and_b32 s{sT2}, s{sW}, 1\ns_add_u32 s{sT}, s{sT}, s{sT2}\ns_mul_i32 s{sT}, s{sT}, 114688")
    A(f"s_lshl_b32 s{sT2}, s{sPr}, 12\ns_add_u32 s{sT}, s{sT}, s{sT2}\ns_lshr_b32 s{sT2}, s{sW}, 1\ns_lshl_b32 s{sT2}, s{sT2}, 11\ns_add_u32 s{sT}, s{sT}, s{sT2}\ns_add_u32 s92, s{sT}, {hex(WS_WD)}")
    CSA = SET0 + 7
    A(f"v_mov_b32 v{CSA}, 0")
    A("s_waitcnt lgkmcnt(4)")
    for ks in range(4):
        A(f"buffer_store_dwordx4 v[{FR+4*ks}:{FR+4*ks+3}], v{vLn}, s[16:19], s91 offen offset:{ks*1024}")
    for r in range(16): A(f"v_dot2c_f32_bf16 v{CSA}, v{FR+r}, v{vOne}")
    A("s_waitcnt lgkmcnt(0)")
    for k2 in range(2):
        A(f"buffer_store_dwordx4 v[{FR+16+4*k2}:{FR+16+4*k2+3}], v{vLn}, s[16:19], s92 offen offset:{k2*1024}")
    A(f"v_mov_b32 v{vPa}, v{CSA}\ns_nop 1\nv_permlane32_swap_b32 v{CSA}, v{vPa}\ns_nop 0\nv_add_f32 v{CSA}, v{CSA}, v{vPa}")
    A(f"s_mul_i32 s{sT}, s{sPq}, 14336\ns_lshl_b32 s{sT2}, s90, 7\ns_add_u32 s{sT}, s{sT}, s{sT2}\ns_add_u32 s{sT}, s{sT}, {hex(WS_CS)}")
    A(f"v_and_b32 v{vPb}, 31, v{lane}\nv_lshlrev_b32 v{vPb}, 2, v{vPb}")
    A(f"buffer_store_dword v{CSA}, v{vPb}, s[16:19], s{sT} offen")
    A(f"s_branch L_{name}_end")
    A(f"L_{name}_fwo:")
    A(f"v_lshlrev_b32 v{vPd}, 5, v{Gh}\nv_lshl_add_u32 v{vPd}, v{Ghf}, 10, v{vPd}\nv_add_u32 v{vPd}, v{vPd}, v{vPa}")
    A(f"s_and_b32 s{sT}, s{sW}, 1\ns_lshl_b32 s{sT}, s{sT}, 6\ns_lshr_b32 s{sT2}, s{sW}, 1\ns_lshl_b32 s{sT2}, s{sT2}, 12\ns_add_u32 s{sT}, s{sT}, s{sT2}\ns_add_u32 s{sT}, s{sT}, {PREP}")
    A(f"v_add_u32 v{vPd}, s{sT}, v{vPd}")
    for u in range(2):
        for k2 in range(2):
            r = FR + 8*u + 4*k2
            A(f"ds_read_b64_tr_b16 v[{r}:{r+1}], v{vPd} offset:{u*8192 + k2*2048}")
            A(f"ds_read_b64_tr_b16 v[{r+2}:{r+3}], v{vPd} offset:{u*8192 + k2*2048 + 512}")
    A(f"s_lshr_b32 s{sT}, s76, 3\ns_lshl_b32 s{sT}, s{sT}, 1\ns_and_b32 s{sT2}, s{sW}, 1\ns_add_u32 s{sT}, s{sT}, s{sT2}\ns_lshl_b32 s{sT}, s{sT}, 15")
    A(f"s_and_b32 s{sT2}, s76, 7\ns_lshl_b32 s{sT2}, s{sT2}, 12\ns_add_u32 s{sT}, s{sT}, s{sT2}\ns_lshr_b32 s{sT2}, s{sW}, 1\ns_lshl_b32 s{sT2}, s{sT2}, 11\ns_add_u32 s{sT}, s{sT}, s{sT2}\ns_add_u32 s91, s{sT}, {hex(WS_WO)}")
    A("s_add_u32 s92, s91, 4096\ns_waitcnt lgkmcnt(0)")
    for u in range(2):
        for k2 in range(2):
            r = FR + 8*u + 4*k2
            A(f"buffer_store_dwordx4 v[{r}:{r+3}], v{vLn}, s[16:19], s{91+u} offen offset:{k2*1024}")
    A(f"L_{name}_end:\ns_endpgm")
```

```python
from asmlib import *
from layout import *

def prologue(A, name, nwg=256):
    A(f".globl {name}\n.p2align 8\n.type {name},@function\n{name}:")
    A(f"s_cmp_ge_u32 s2, {nwg}")
    A(f"s_cbranch_scc1 L_{name}_end")

def kd(name, vgpr, sgpr=96, accum=None):
    acc = accum if accum is not None else ((vgpr + 3)//4)*4
    return f""".amdhsa_kernel {name}
  .amdhsa_next_free_vgpr {vgpr}
  .amdhsa_next_free_sgpr {sgpr}
  .amdhsa_accum_offset {acc}
  .amdhsa_group_segment_fixed_size 0
  .amdhsa_kernarg_size 80
  .amdhsa_user_sgpr_count 2
  .amdhsa_user_sgpr_kernarg_segment_ptr 1
  .amdhsa_system_sgpr_workgroup_id_x 1
  .amdhsa_float_denorm_mode_32 3
  .amdhsa_float_denorm_mode_16_64 3
.end_amdhsa_kernel"""

def srd(A, d, lo, hi, size):
    A(f"s_mov_b32 s{d}, s{lo}\ns_and_b32 s{d+1}, s{hi}, 0xffff\ns_mov_b32 s{d+2}, {hex(size)}\ns_mov_b32 s{d+3}, 0x20000")

def gen_gemm64(A, name, which):
    down = which == 'down'
    KS = 112 if down else 32
    KW = KS // 4
    TSTR = KS * 1024
    WS_A = WS_WD if down else WS_WO
    WS_B = WS_HH if down else WS_O
    NSET = 7 if down else 8
    ACC = 16; BUF = 80; RES = 8
    vL, vA0, vA1, vB0, vB1, vT0, vT1 = 1, 2, 3, 4, 5, 6, 7
    sW, sRB, sCB, sK, sK2, sT0, sT1, sT2, sIt = 20, 21, 22, 23, 24, 25, 26, 27, 28
    prologue(A, name)
    A("s_load_dwordx2 s[4:5], s[0:1], 72")
    if down: A("s_load_dwordx2 s[6:7], s[0:1], 56")
    else:    A("s_load_dwordx2 s[6:7], s[0:1], 0")
    A(f"v_lshrrev_b32 v{vT0}, 6, v0")
    A(f"v_and_b32 v{vL}, 63, v0")
    A(f"v_readfirstlane_b32 s{sW}, v{vT0}")
    A(f"v_lshlrev_b32 v{vL}, 4, v{vL}")
    A(f"s_and_b32 s{sRB}, s2, 7\ns_lshl_b32 s{sRB}, s{sRB}, 2\ns_bfe_u32 s{sT0}, s2, 0x20003\ns_add_u32 s{sRB}, s{sRB}, s{sT0}")
    A(f"s_lshr_b32 s{sCB}, s2, 5")
    A(f"s_and_b32 s{sT0}, s{sW}, 1")
    A(f"s_lshr_b32 s{sT1}, s{sW}, 1")
    A(f"s_lshl_b32 s30, s{sCB}, 1\ns_add_u32 s31, s30, s{sT0}")
    A(f"s_xor_b32 s32, s31, 1")
    A(f"s_lshl_b32 s33, s{sRB}, 1\ns_add_u32 s33, s33, s{sT1}")
    A(f"s_xor_b32 s34, s33, 1")
    A(f"s_mul_i32 s35, s{sW}, {KW*1024}")
    for (vr, st, base) in ((vA0, 31, WS_A), (vA1, 32, WS_A), (vB0, 33, WS_B), (vB1, 34, WS_B)):
        A(f"s_mul_i32 s36, s{st}, {TSTR}\ns_add_u32 s36, s36, s35\ns_add_u32 s36, s36, {hex(base)}")
        A(f"v_add_u32 v{vr}, s36, v{vL}")
    A("s_waitcnt lgkmcnt(0)")
    srd(A, 8, 4, 5, WS_END)
    srd(A, 12, 6, 7, S*D*2)
    if down:
        A(f"s_lshl_b32 s36, s33, 15\ns_lshl_b32 s37, s31, 11\ns_add_u32 s36, s36, s37\ns_add_u32 s36, s36, {hex(WS_H)}")
        A(f"buffer_load_dwordx4 v[{RES}:{RES+3}], v{vL}, s[8:11], s36 offen")
        A(f"buffer_load_dwordx4 v[{RES+4}:{RES+7}], v{vL}, s[8:11], s36 offen offset:1024")
    A(f"v_and_b32 v{vT0}, 31, v0\nv_lshlrev_b32 v{vT0}, 10, v{vT0}\nv_bfe_u32 v{vT1}, v0, 5, 1\nv_lshl_add_u32 v{vT0}, v{vT1}, 4, v{vT0}")
    A(f"s_lshl_b32 s38, s33, 15\ns_lshl_b32 s37, s31, 6\ns_add_u32 s38, s38, s37")
    if not down:
        A(f"buffer_load_dwordx4 v[{RES}:{RES+3}], v{vT0}, s[12:15], s38 offen")
        A(f"buffer_load_dwordx4 v[{RES+4}:{RES+7}], v{vT0}, s[12:15], s38 offen offset:32")
    def loads(u, k, sreg):
        b = BUF + 16*u
        for t, vr in enumerate((vA0, vA1, vB0, vB1)):
            off = f" offset:{k*1024}" if k else ""
            A(f"buffer_load_dwordx4 v[{b+4*t}:{b+4*t+3}], v{vr}, s[8:11], s{sreg} offen{off}")
    def mfmas(u):
        b = BUF + 16*u
        for dm in range(2):
            for dn in range(2):
                acc = ACC + 16*(dn + 2*dm)
                A(f"v_mfma_f32_32x32x16_bf16 v[{acc}:{acc+15}], v[{b+4*dn}:{b+4*dn+3}], v[{b+8+4*dm}:{b+8+4*dm+3}], v[{acc}:{acc+15}]")
    A(f"s_mov_b32 s{sK}, 0\ns_movk_i32 s{sK2}, 0x1000")
    for u in range(NSET):
        loads(u, u % 4, sK if u < 4 else sK2)
    for r in range(64): A(f"v_mov_b32 v{ACC+r}, 0")
    if down:
        A(f"s_mov_b32 s{sIt}, 3")
        A(f"L_{name}_loop:")
        A(f"s_add_u32 s{sK}, s{sK}, {NSET*1024}\ns_add_u32 s{sK2}, s{sK2}, {NSET*1024}")
        for u in range(NSET):
            A(f"s_waitcnt vmcnt({4*(NSET-1)})")
            mfmas(u)
            loads(u, u % 4, sK if u < 4 else sK2)
        A(f"s_sub_u32 s{sIt}, s{sIt}, 1\ns_cmp_lg_u32 s{sIt}, 0\ns_cbranch_scc1 L_{name}_loop")
    for u in range(NSET):
        A(f"s_waitcnt vmcnt({4*(NSET-1-u)})")
        mfmas(u)
    for d in (1, 2, 3):
        A(f"s_xor_b32 s36, s{sW}, {d}\ns_mul_i32 s36, s36, 12288\ns_add_u32 s36, s36, {(d-1)*4096}")
        A(f"v_add_u32 v{2+d-1}, s36, v{vL}")
    A(f"s_mul_i32 s36, s{sW}, 12288\nv_add_u32 v5, s36, v{vL}")
    A("s_nop 4")
    for d in (1, 2, 3):
        for q in range(4):
            r = ACC + 16*d + 4*q
            if d == 3 and q == 0: A("s_nop 3")
            A(f"ds_write_b128 v{2+d-1}, v[{r}:{r+3}] offset:{q*1024}")
    A("s_waitcnt lgkmcnt(0)\ns_barrier")
    T = BUF
    for d in range(3):
        for q in range(4):
            A(f"ds_read_b128 v[{T+16*d+4*q}:{T+16*d+4*q+3}], v5 offset:{d*4096+q*1024}")
    U = T + 48
    if not down:
        A(f"v_permlane32_swap_b32 v{RES}, v{RES+2}\nv_permlane32_swap_b32 v{RES+1}, v{RES+3}")
        A(f"v_permlane32_swap_b32 v{RES+4}, v{RES+6}\nv_permlane32_swap_b32 v{RES+5}, v{RES+7}")
        A("s_nop 0")
    for i in range(8):
        A(f"v_lshlrev_b32 v{U+2*i}, 16, v{RES+i}\nv_and_b32 v{U+2*i+1}, 0xffff0000, v{RES+i}")
    for i in range(0, 16, 2):
        A(f"v_pk_add_f32 v[{ACC+i}:{ACC+i+1}], v[{ACC+i}:{ACC+i+1}], v[{U+i}:{U+i+1}]")
    for d in range(3):
        A(f"s_waitcnt lgkmcnt({8-4*d})")
        for i in range(0, 16, 2):
            A(f"v_pk_add_f32 v[{ACC+i}:{ACC+i+1}], v[{ACC+i}:{ACC+i+1}], v[{T+16*d+i}:{T+16*d+i+1}]")
    P = ACC + 16
    for i in range(8):
        A(f"v_cvt_pk_bf16_f32 v{P+i}, v{ACC+2*i}, v{ACC+2*i+1}")
    if down:
        A("s_nop 1")
        A(f"v_permlane32_swap_b32 v{P}, v{P+2}\nv_permlane32_swap_b32 v{P+1}, v{P+3}")
        A(f"v_permlane32_swap_b32 v{P+4}, v{P+6}\nv_permlane32_swap_b32 v{P+5}, v{P+7}")
        A(f"buffer_store_dwordx4 v[{P}:{P+3}], v{vT0}, s[12:15], s38 offen")
        A(f"buffer_store_dwordx4 v[{P+4}:{P+7}], v{vT0}, s[12:15], s38 offen offset:32")
    else:
        A(f"s_lshl_b32 s36, s33, 15\ns_lshl_b32 s37, s31, 11\ns_add_u32 s36, s36, s37\ns_add_u32 s36, s36, {hex(WS_H)}")
        A(f"buffer_store_dwordx4 v[{P}:{P+3}], v{vL}, s[8:11], s36 offen")
        A(f"buffer_store_dwordx4 v[{P+4}:{P+7}], v{vL}, s[8:11], s36 offen offset:1024")
        Q = P + 8
        A(f"v_mov_b32 v{Q}, 0\nv_mov_b32 v{Q+1}, 0\nv_mov_b32 v{Q+2}, 0x3f803f80")
        for i in range(8):
            A(f"v_dot2c_f32_bf16 v{Q}, v{P+i}, v{Q+2}")
            A(f"v_dot2c_f32_bf16 v{Q+1}, v{P+i}, v{P+i}")
        A(f"s_nop 2\nv_mov_b32 v{Q+4}, v{Q}\nv_mov_b32 v{Q+5}, v{Q+1}\ns_nop 1")
        A(f"v_permlane32_swap_b32 v{Q}, v{Q+4}\nv_permlane32_swap_b32 v{Q+1}, v{Q+5}\ns_nop 0")
        A(f"v_pk_add_f32 v[{Q}:{Q+1}], v[{Q}:{Q+1}], v[{Q+4}:{Q+5}]")
        A(f"s_lshl_b32 s36, s33, 12\ns_bfe_u32 s37, s31, 0x20001\ns_lshl_b32 s37, s37, 10\ns_add_u32 s36, s36, s37")
        A(f"s_lshr_b32 s37, s31, 3\ns_lshl_b32 s37, s37, 9\ns_add_u32 s36, s36, s37")
        A(f"s_and_b32 s37, s31, 1\ns_lshl_b32 s37, s37, 3\ns_add_u32 s36, s36, s37\ns_add_u32 s36, s36, {hex(WS_ST)}")
        A(f"v_and_b32 v{vT1}, 31, v0\nv_lshlrev_b32 v{vT1}, 4, v{vT1}")
        A(f"buffer_store_dwordx2 v[{Q}:{Q+1}], v{vT1}, s[8:11], s36 offen")
    A(f"L_{name}_end:\ns_endpgm")
```

```python
from asmlib import *
from layout import *
from gen_k24 import prologue, kd, srd

LOG2E = 1.4426950408889634
import struct
def f2h(x): return hex(struct.unpack("<I", struct.pack("<f", x))[0])

K3_LDS = 131072 + 1024

def glu_epilogue_instrs(E, C, T, U, P, vA1, vB1, vRS, vC2):
    L = []
    for p in range(4):
        i, j = 2*p, 2*p+1
        L += [f"v_mul_f32 v{T+i}, v{C+i}, v{vB1}", f"v_mul_f32 v{T+j}, v{C+j}, v{vB1}",
              f"v_fma_f32 v{T+i}, v{E+i}, v{vA1}, v{T+i}", f"v_fma_f32 v{T+j}, v{E+j}, v{vA1}, v{T+j}",
              f"v_exp_f32 v{T+i}, v{T+i}", f"v_exp_f32 v{T+j}, v{T+j}",
              f"v_mul_f32 v{U+i}, v{C+8+i}, v{vC2}", f"v_mul_f32 v{U+j}, v{C+8+j}, v{vC2}",
              f"v_add_f32 v{T+i}, 1.0, v{T+i}", f"v_add_f32 v{T+j}, 1.0, v{T+j}",
              f"v_rcp_f32 v{T+i}, v{T+i}", f"v_rcp_f32 v{T+j}, v{T+j}",
              f"v_fma_f32 v{U+i}, v{E+8+i}, v{vRS}, v{U+i}", f"v_fma_f32 v{U+j}, v{E+8+j}, v{vRS}, v{U+j}",
              f"v_mul_f32 v{U+i}, v{U+i}, v{T+i}", f"v_mul_f32 v{U+j}, v{U+j}, v{T+j}",
              f"v_cvt_pk_bf16_f32 v{P+p}, v{U+i}, v{U+j}"]
    return L

def gen_k3(A, name):
    vL, vWc, vWn, vCS, vA1, vB1, vRS, vC2, vT0, vT1 = 1, 2, 3, 4, 5, 6, 7, 8, 9, 10
    X = 12; M = 140; E = 156; WB = 172; C = 204; T = 220; U = 228; P = 236
    NB, PF = 8, 6
    sW, sRB, sCT, sJ, sDs, sDm, sSt, sT = 20, 21, 22, 23, 24, 25, 26, 27
    prologue(A, name)
    A("s_load_dwordx2 s[4:5], s[0:1], 72")
    A(f"v_lshrrev_b32 v{vT0}, 6, v0")
    A(f"v_and_b32 v{vL}, 63, v0")
    A(f"v_readfirstlane_b32 s{sW}, v{vT0}")
    A(f"v_lshlrev_b32 v{vL}, 4, v{vL}")
    A(f"s_and_b32 s{sRB}, s2, 7\ns_lshl_b32 s{sRB}, s{sRB}, 1\ns_bfe_u32 s{sT}, s2, 0x10003\ns_add_u32 s{sRB}, s{sRB}, s{sT}")
    A(f"s_lshr_b32 s{sCT}, s2, 4")
    A(f"s_lshl_b32 s{sRB}, s{sRB}, 2\ns_add_u32 s{sRB}, s{sRB}, s{sW}")
    A(f"s_mul_i32 s30, s{sCT}, 896\ns_add_u32 s30, s30, {hex(WS_CS)}")
    A(f"v_lshlrev_b32 v{vT0}, 2, v0")
    A(f"s_lshl_b32 s31, s{sRB}, 12\ns_add_u32 s31, s31, {hex(WS_ST)}")
    A(f"s_mul_i32 s{sDs}, s{sCT}, {7*32768}\ns_lshl_b32 s32, s{sW}, 13\ns_add_u32 s{sDs}, s{sDs}, s32\ns_add_u32 s{sDs}, s{sDs}, {hex(WS_WGU)}")
    A(f"s_mov_b32 s{sDm}, s32")
    A(f"s_lshl_b32 s33, s{sRB}, 15\ns_add_u32 s33, s33, {hex(WS_H)}")
    A(f"s_mul_i32 s{sSt}, s{sRB}, 114688\ns_mul_i32 s34, s{sCT}, 7168\ns_add_u32 s{sSt}, s{sSt}, s34\ns_add_u32 s{sSt}, s{sSt}, {hex(WS_HH - 1024)}")
    A("s_waitcnt lgkmcnt(0)")
    srd(A, 8, 4, 5, WS_END)
    for j in range(4):
        A(f"buffer_load_dwordx4 v[{T+4*j}:{T+4*j+3}], v{vL}, s[8:11], s31 offen offset:{j*1024}")
    for kc in range(8):
        A(f"buffer_load_dword v{C+kc}, v{vT0}, s[8:11], s30 offen")
        if kc < 7: A(f"s_add_u32 s30, s30, 14336")
    def dma_panel():
        A(f"s_mov_b32 m0, s{sDm}\ns_add_u32 s35, s{sDs}, 4096")
        for i in range(4): A(f"buffer_load_dwordx4 v{vL}, s[8:11], s{sDs} offen offset:{i*1024} lds")
        A(f"s_add_u32 m0, s{sDm}, 4096\ns_add_u32 s{sDs}, s{sDs}, 32768")
        for i in range(4): A(f"buffer_load_dwordx4 v{vL}, s[8:11], s35 offen offset:{i*1024} lds")
        A(f"s_add_u32 s{sDm}, s{sDm}, 32768\ns_and_b32 s{sDm}, s{sDm}, 0x1ffff")
    dma_panel()
    for g in range(8):
        for i in range(4):
            ks = 4*g + i
            off = f" offset:{i*1024}" if i else ""
            A(f"buffer_load_dwordx4 v[{X+4*ks}:{X+4*ks+3}], v{vL}, s[8:11], s33 offen{off}")
        if g < 7: A("s_add_u32 s33, s33, 4096")
    dma_panel()
    A("s_waitcnt vmcnt(48)")
    A(f"v_add_f32 v{vT0}, v{T}, v{T+2}\nv_add_f32 v{vT1}, v{T+1}, v{T+3}")
    for j in range(1, 4):
        A(f"v_add_f32 v{vT0}, v{vT0}, v{T+4*j}\nv_add_f32 v{vT1}, v{vT1}, v{T+4*j+1}")
        A(f"v_add_f32 v{vT0}, v{vT0}, v{T+4*j+2}\nv_add_f32 v{vT1}, v{vT1}, v{T+4*j+3}")
    for kc in range(1, 8): A(f"v_add_f32 v{C}, v{C}, v{C+kc}")
    A(f"v_mov_b32 v{U}, v{vT0}\nv_mov_b32 v{U+1}, v{vT1}")
    A(f"v_lshlrev_b32 v{U+2}, 2, v0\nv_add_u32 v{U+2}, 131072, v{U+2}")
    A(f"ds_write_b32 v{U+2}, v{C}")
    A(f"v_permlane32_swap_b32 v{vT0}, v{U}\nv_permlane32_swap_b32 v{vT1}, v{U+1}\ns_nop 0")
    A(f"v_add_f32 v{vT0}, v{vT0}, v{U}\nv_add_f32 v{vT1}, v{vT1}, v{U+1}")
    A(f"v_mul_f32 v{vT0}, {f2h(1/512)}, v{vT0}\nv_mul_f32 v{vT1}, {f2h(1/512)}, v{vT1}")
    A(f"v_fma_f32 v{vT1}, -v{vT0}, v{vT0}, v{vT1}\nv_add_f32 v{vT1}, {f2h(1e-5)}, v{vT1}")
    A(f"v_rsq_f32 v{vRS}, v{vT1}\ns_nop 0")
    A(f"v_mul_f32 v{vA1}, {f2h(-LOG2E)}, v{vRS}")
    A(f"v_mul_f32 v{vC2}, v{vT0}, v{vRS}")
    A(f"v_mul_f32 v{vB1}, {f2h(LOG2E)}, v{vC2}\nv_sub_f32 v{vC2}, 0, v{vC2}")
    dma_panel()
    A(f"v_mov_b32 v{vWc}, v{vL}\nv_add_u32 v{vWn}, 32768, v{vL}")
    A(f"v_bfe_u32 v{vCS}, v0, 5, 1\nv_lshlrev_b32 v{vCS}, 4, v{vCS}\nv_add_u32 v{vCS}, {131072-128}, v{vCS}")
    A(f"s_mov_b32 s{sJ}, 0")
    A("s_waitcnt vmcnt(48) lgkmcnt(0)\ns_barrier")
    for k in range(PF):
        A(f"ds_read_b128 v[{WB+4*k}:{WB+4*k+3}], v{vWc} offset:{k*1024}")
    epi = glu_epilogue_instrs(E, C, T, U, P, vA1, vB1, vRS, vC2)
    E0, E1 = 8, 27
    n = len(epi); per = [ [] for _ in range(32) ]
    for i, ins in enumerate(epi):
        per[E0 + (i * (E1 - E0)) // n].append(ins)
    A(f"L_{name}_loop:")
    q = [("f", k) for k in range(PF)]
    for ks in range(32):
        idx = q.index(("f", ks))
        lg = len(q) - 1 - idx
        w = f"lgkmcnt({lg})"
        if ks <= 27: w = f"vmcnt({47-ks}) " + w
        A(f"s_waitcnt {w}")
        q = q[idx+1:]
        b = WB + 4*(ks % NB)
        Dr = E if ks == 31 else M
        Cs = "0" if ks == 0 else f"v[{M}:{M+15}]"
        A(f"v_mfma_f32_32x32x16_bf16 v[{Dr}:{Dr+15}], v[{b}:{b+3}], v[{X+4*ks}:{X+4*ks+3}], {Cs}")
        if ks == 27:
            A(f"s_cmp_lt_u32 s{sJ}, 5\ns_cbranch_scc1 L_{name}_w8\ns_waitcnt vmcnt(0)\nL_{name}_w8:")
            A("s_waitcnt vmcnt(8)\ns_barrier")
        nk = ks + PF
        nb = WB + 4*(nk % NB)
        if nk < 32:
            A(f"ds_read_b128 v[{nb}:{nb+3}], v{vWc} offset:{nk*1024}")
            q.append(("f", nk))
        elif ks >= 27:
            pass
        if ks == 1:
            for qq in range(4):
                A(f"ds_read_b128 v[{C+4*qq}:{C+4*qq+3}], v{vCS} offset:{qq*32}")
                q.append(("c", qq))
        for ins in per[ks]: A(ins)
        if ks == 27:
            A(f"s_cmp_eq_u32 s{sJ}, 0\ns_cbranch_scc1 L_{name}_nost")
            A(f"buffer_store_dwordx4 v[{P}:{P+3}], v{vL}, s[8:11], s{sSt} offen\nL_{name}_nost:")
        if ks >= 26:
            pass
        if ks >= 28:
            cnt = {28: 2, 29: 2, 30: 1, 31: 1}[ks]
            st = {28: 0, 29: 2, 30: 4, 31: 5}[ks]
            for k in range(st, st+cnt):
                nb = WB + 4*((32 + k) % NB)
                A(f"ds_read_b128 v[{nb}:{nb+3}], v{vWn} offset:{k*1024}")
                q.append(("f", 32 + k))
        if ks == 28:
            A(f"s_cmp_ge_u32 s{sJ}, 4\ns_cbranch_scc1 L_{name}_nodma")
            dma_panel()
            A(f"L_{name}_nodma:")
    assert q == [("f", 32 + k) for k in range(PF)], q
    A(f"s_add_u32 s{sJ}, s{sJ}, 1\ns_add_u32 s{sSt}, s{sSt}, 1024")
    A(f"v_mov_b32 v{vWc}, v{vWn}\nv_add_u32 v{vWn}, 32768, v{vWn}\nv_and_b32 v{vWn}, 0x1ffff, v{vWn}\nv_add_u32 v{vCS}, 128, v{vCS}")
    A(f"s_cmp_lt_u32 s{sJ}, 7\ns_cbranch_scc1 L_{name}_loop")
    for qq in range(4):
        A(f"ds_read_b128 v[{C+4*qq}:{C+4*qq+3}], v{vCS} offset:{qq*32}")
    A("s_waitcnt lgkmcnt(0)\ns_nop 7")
    for ins in epi: A(ins)
    A(f"buffer_store_dwordx4 v[{P}:{P+3}], v{vL}, s[8:11], s{sSt} offen")
    A(f"L_{name}_end:\ns_endpgm")
```

```python
import sys
sys.path.insert(0, 'dev')
from asmlib import *
from layout import *
from gen_k24 import *
from gen_k3 import gen_k3, K3_LDS
from gen_k1 import gen_k1, K1_LDS

HEADER = """; Fused pre-LN sliding-window(dilated) attention block + pre-LN GLU FFN, 4 launches.
"""
def build_all(which=("k1","k2","k3","k4")):
    out = HEADER
    lds = {"k1": K1_LDS, "k2": 49152, "k3": K3_LDS, "k4": 49152}
    for k in which:
        out += f"; @launch kernel={k}_kernel grid=(256,1,1) block=(256,1,1) lds={lds[k]}\n"
    out += '.amdgcn_target "amdgcn-amd-amdhsa--gfx950"\n.text\n'
    vg = {}
    for k in ("k1","k2","k3","k4"):
        A = Asm()
        if k == "k1": gen_k1(A, "k1_kernel"); vg[k] = 232
        if k == "k2": gen_gemm64(A, "k2_kernel", "wo"); vg[k] = 208
        if k == "k3": gen_k3(A, "k3_kernel"); vg[k] = 240
        if k == "k4": gen_gemm64(A, "k4_kernel", "down"); vg[k] = 192
        errs = check(A.lines)
        for e in errs: print(k, e, file=sys.stderr)
        assert not errs
        out += A.text()
    out += '.section .rodata,"a"\n'
    for k in ("k1","k2","k3","k4"):
        out += ".p2align 6\n" + kd(f"{k}_kernel", vg[k]) + "\n"
    return out
if __name__ == "__main__":
    txt = build_all()
    open("sequential_preLN__sliding_local_dilated__glu_gated_glu__prompt.s", "w").write(txt)
    print("written", len(txt), "bytes")
```

```python
import sys
sys.path.insert(0, 'dev')
from asmlib import *
from layout import *
from gen_k24 import *
from gen_k3 import gen_k3, K3_LDS
from gen_k1 import gen_k1, K1_LDS

HEADER = """; Fused pre-LN sliding-window(dilated) attention block + pre-LN GLU FFN, 4 launches.
"""
def build_all(which=("k1","k2","k3","k4")):
    out = HEADER
    lds = {"k0": 0, "k1": K1_LDS, "k2": 49152, "k3": K3_LDS, "k4": 49152}
    for k in which:
        out += f"; @launch kernel={k}_kernel grid=(256,1,1) block=(256,1,1) lds={lds[k]}\n"
    out += '.amdgcn_target "amdgcn-amd-amdhsa--gfx950"\n.text\n'
    vg = {}
    ks = [k for k in ("k0","k1","k2","k3","k4") if k in which]
    for k in ks:
        A = Asm()
        if k == "k0":
            A(".globl k0_kernel\n.p2align 8\n.type k0_kernel,@function\nk0_kernel:\ns_endpgm"); vg[k] = 8
        if k == "k1": gen_k1(A, "k1_kernel"); vg[k] = 232
        if k == "k2": gen_gemm64(A, "k2_kernel", "wo"); vg[k] = 208
        if k == "k3": gen_k3(A, "k3_kernel"); vg[k] = 240
        if k == "k4": gen_gemm64(A, "k4_kernel", "down"); vg[k] = 192
        errs = check(A.lines)
        for e in errs: print(k, e, file=sys.stderr)
        assert not errs
        out += A.text()
    out += '.section .rodata,"a"\n'
    for k in ks:
        out += ".p2align 6\n" + kd(f"{k}_kernel", vg[k]) + "\n"
    return out
if __name__ == "__main__":
    if len(sys.argv) > 2:
        txt = build_all(tuple(sys.argv[2].split(",")))
        open(sys.argv[1], "w").write(txt); print("written", sys.argv[1]); sys.exit(0)
    txt = build_all()
    open("sequential_preLN__sliding_local_dilated__glu_gated_glu__prompt.s", "w").write(txt)
    print("written", len(txt), "bytes")
```
